```python
import torch

def _softmax(x, axis=-1):
    return torch.softmax(x, dim=axis)
def _gelu(x):
    return torch.nn.functional.gelu(x, approximate="tanh")
def _silu(x):
    return torch.nn.functional.silu(x)
def _sigmoid(x):
    return torch.sigmoid(x)
def _layernorm(x, axis=-1, eps=1e-5):
    m = x.mean(dim=axis, keepdim=True)
    v = x.var(dim=axis, keepdim=True, unbiased=False)
    return (x - m) / torch.sqrt(v + eps)
def _scatter_add(tgt, idx, src, axis=0):
    return tgt.clone().index_add_(axis, idx, src)
def _segment_sum(src, seg, n):
    out = torch.zeros((n,) + src.shape[1:], dtype=src.dtype)
    return out.index_add_(0, seg, src)
def _pad(x, pw):
    flat = tuple(v for pair in reversed(pw) for v in pair)
    return torch.nn.functional.pad(x, flat)

kernel_name = 'parallel_sum__ssm_conv_s4__dense_activation_squared_relu__prompt'

def setup_inputs():

    _w = (lambda a: (lambda t: t.to(torch.bfloat16) if t.is_floating_point() else t)(torch.as_tensor(a)))
    def _A_setup():
        B, L, D, N = 1, 2048, 448, 256
        A_re = -(lambda _x: torch.exp(torch.as_tensor(_x)))((lambda *s: torch.randn(*s, dtype=torch.bfloat16) * 3.2)(D, N))
        A_im = torch.pi * (lambda *s: torch.randn(*s, dtype=torch.bfloat16) * 0.2)(D, N)
        B_re = (lambda *s: torch.randn(*s, dtype=torch.bfloat16) * 0.4)(D, N)
        B_im = (lambda *s: torch.randn(*s, dtype=torch.bfloat16) * 0.4)(D, N)
        C_re = (lambda *s: torch.randn(*s, dtype=torch.bfloat16) * 0.4)(D, N)
        C_im = (lambda *s: torch.randn(*s, dtype=torch.bfloat16) * 0.4)(D, N)
        log_dt = (lambda *s: torch.randn(*s, dtype=torch.bfloat16) * 0.2)(D) * 0.5 - 4.0
        Dskip = (lambda *s: torch.randn(*s, dtype=torch.bfloat16) * 0.4)(D)
        return {
            "u": _w((lambda *s: torch.randn(*s, dtype=torch.bfloat16) * 0.05)(B, L, D)),
            "A_re": _w(A_re),
            "A_im": _w(A_im),
            "B_re": _w(B_re),
            "B_im": _w(B_im),
            "C_re": _w(C_re),
            "C_im": _w(C_im),
            "log_dt": _w(log_dt),
            "Dskip": _w(Dskip),
        }
    _A_in = _A_setup()

    def _B_setup():
        B, S, D, F = 1, 2048, 448, 1792
        return {
            "x": _w((lambda *s: torch.randn(*s, dtype=torch.bfloat16) * 0.05)(B, S, D)),
            "w1": _w((lambda *s: torch.randn(*s, dtype=torch.bfloat16) * 0.05)(D, F)),
            "b1": _w((lambda *s: torch.randn(*s, dtype=torch.bfloat16) * 0.2)(F)),
            "w2": _w((lambda *s: torch.randn(*s, dtype=torch.bfloat16) * 0.05)(F, D)),
            "b2": _w((lambda *s: torch.randn(*s, dtype=torch.bfloat16) * 0.8)(D)),
        }
    _B_in = _B_setup()

    return {
        "A_u": _A_in["u"],
        "A_A_re": _A_in["A_re"],
        "A_A_im": _A_in["A_im"],
        "A_B_re": _A_in["B_re"],
        "A_B_im": _A_in["B_im"],
        "A_C_re": _A_in["C_re"],
        "A_C_im": _A_in["C_im"],
        "A_log_dt": _A_in["log_dt"],
        "A_Dskip": _A_in["Dskip"],
        "B_x": _B_in["x"],
        "B_w1": _B_in["w1"],
        "B_b1": _B_in["b1"],
        "B_w2": _B_in["w2"],
        "B_b2": _B_in["b2"],
    }

def reference(A_u, A_A_re, A_A_im, A_B_re, A_B_im, A_C_re, A_C_im, A_log_dt, A_Dskip, B_x, B_w1, B_b1, B_w2, B_b2):
    def _A_ref(u, A_re, A_im, B_re, B_im, C_re, C_im, log_dt, Dskip):
        Bsz, L, D = u.shape
        dt = torch.exp(log_dt)[:, None]
        A = A_re + 1j * A_im
        Bc = B_re + 1j * B_im
        Cc = C_re + 1j * C_im
        logdA = dt * A
        dB = dt * Bc
        l = (lambda x, dt: x.to(dt))(torch.arange(L), A_re.dtype)
        P = torch.exp(logdA[:, :, None] * l[None, None, :])
        K = torch.einsum("dn,dnl,dn->dl", Cc, P, dB).real
        L2 = 2 * L
        Kp = _pad(K, ((0, 0), (0, L)))
        up = (lambda x, *d: x.permute(*d))(u, 0, 2, 1)
        up = _pad(up, ((0, 0), (0, 0), (0, L)))
        Kf = (lambda x, axes=(-2,-1): torch.fft.rfft2(x.float(), dim=axes))(Kp[:, None, :], axes=(-2, -1))
        Uf = (lambda x, axes=(-2,-1): torch.fft.rfft2(x.float(), dim=axes))(up[:, :, None, :], axes=(-2, -1))
        Yf = Uf * Kf[None, :, :, :]
        y = (lambda x, s, axes=(-2,-1): torch.fft.irfft2(x, s=s, dim=axes).to(torch.bfloat16))(Yf, (1, L2), axes=(-2, -1))[:, :, 0, :L]
        y = (lambda x, *d: x.permute(*d))(y, 0, 2, 1) + u * Dskip[None, None, :]
        return y

    def _B_ref(x, w1, b1, w2, b2):
        h = torch.einsum("bsd,df->bsf", x, w1) + b1
        zero = torch.zeros_like(h)
        r = torch.where(h > zero, h, zero)
        h = r * r
        out = torch.einsum("bsf,fd->bsd", h, w2) + b2
        return out

    x = A_u
    xn = _layernorm(x, axis=-1)
    return x + _A_ref(xn, A_A_re, A_A_im, A_B_re, A_B_im, A_C_re, A_C_im, A_log_dt, A_Dskip) + _B_ref(xn, B_w1, B_b1, B_w2, B_b2)
```

```python
import re, copy

TRANS = ("v_exp_f32","v_log_f32","v_rcp_f32","v_rsq_f32","v_sqrt_f32","v_sin_f32","v_cos_f32")
_reg_re = re.compile(r"^(-|\|)*([vas])(\d+|\[(\d+):(\d+)\])\|?$")

def regs_of(op):
    op = op.strip()
    if op in ("vcc","exec","m0","scc"): return [op]
    if op in ("vcc_lo","vcc_hi"): return ["vcc"]
    if op in ("exec_lo","exec_hi"): return ["exec"]
    m = _reg_re.match(op)
    if not m: return []
    k = m.group(2)
    if m.group(4) is not None:
        return [f"{k}{i}" for i in range(int(m.group(4)), int(m.group(5))+1)]
    return [f"{k}{m.group(3)}"]

def split_ops(s):
    out=[]; depth=0; cur=""
    for ch in s:
        if ch in "[(": depth+=1
        if ch in "])": depth-=1
        if ch=="," and depth==0: out.append(cur.strip()); cur=""
        else: cur+=ch
    if cur.strip(): out.append(cur.strip())
    return out

class Ins:
    __slots__=("text","op","reads","writes","kind","passes","dpp","srcC","srcAB","store_wide","ws","dppsrc","sreads")
    def __init__(self, text):
        self.text=text
        t=text.split(";")[0].strip()
        parts=t.split(None,1)
        op=parts[0]; self.op=op
        rest=parts[1] if len(parts)>1 else ""
        ops=split_ops(rest)
        mods=""
        if ops:
            l=ops[-1].split(None,1)
            ops[-1]=l[0]
            mods=l[1] if len(l)>1 else ""
        R=lambda i: regs_of(ops[i]) if i<len(ops) else []
        allr=lambda a: [r for o in ops[a:] for r in regs_of(o)]
        self.reads=set(); self.writes=set(); self.kind="other"; self.passes=0; self.dpp=False
        self.srcC=set(); self.srcAB=set(); self.store_wide=set(); self.ws=1; self.dppsrc=set()
        base=re.sub(r"_(e32|e64|dpp|sdwa)$","",op)
        if op.startswith("v_mfma"):
            self.kind="mfma"; self.passes=8 if "32x32x16" in op else 4
            assert "32x32x16" in op or "16x16x32" in op
            self.writes=set(R(0)); self.srcAB=set(R(1)+R(2)); self.srcC=set(R(3)); self.reads=self.srcAB|self.srcC
        elif op.startswith("v_"):
            self.kind="trans" if base in TRANS else "valu"
            if base.startswith("v_permlane") and "swap" in base:
                self.kind="permlane"; self.reads=set(allr(0)); self.writes=set(allr(0))
            else:
                self.writes=set(R(0)); self.reads=set(allr(1))
                if base in ("v_fmac_f32","v_dot2c_f32_bf16","v_pk_fmac_f16","v_writelane_b32"): self.reads|=self.writes
                if base in ("v_readfirstlane_b32","v_readlane_b32"): self.kind="readlane"
                if base in ("v_add_co_u32","v_sub_co_u32","v_addc_co_u32"):
                    self.writes|=set(R(1)); self.reads=set(allr(2))
                if re.search(r"row_|quad_perm|wave_",mods):
                    self.dpp=True; self.dppsrc=set(R(1)); self.reads|=self.writes
        elif op.startswith("ds_"):
            self.kind="ds"
            if op.startswith("ds_read") or op.startswith("ds_bpermute") or op.startswith("ds_swizzle"):
                self.writes=set(R(0)); self.reads=set(allr(1))
                if "d16" in op: self.reads|=self.writes
            else:
                self.reads=set(allr(0))
            if "addtid" in op: self.reads.add("m0")
        elif op.startswith("buffer_") or op.startswith("global_"):
            self.kind="vmem"
            islds = (" lds" in " "+mods) or ("load_lds" in op)
            if "load" in op and not islds:
                self.writes=set(R(0)); self.reads=set(allr(1))
                if "d16" in op: self.reads|=self.writes
            else:
                self.reads=set(allr(0))
                if islds: self.reads.add("m0")
                if "store" in op and ("x4" in op or "x3" in op):
                    self.store_wide=set(R(0) if op.startswith("buffer_") else R(1))
        elif op.startswith("s_load") or op in ("s_memtime","s_memrealtime"):
            self.kind="smem"; self.writes=set(R(0)); self.reads=set(allr(1))
        elif op=="s_nop":
            self.kind="nop"; self.ws=int(ops[0],0)+1
        elif op in ("s_waitcnt","s_barrier","s_endpgm","s_sleep","s_setprio","s_branch") or op.startswith("s_cbranch"):
            self.kind="ctl"
            if "vcc" in op: self.reads={"vcc"}
        elif op.startswith("s_cmp") or op.startswith("s_bitcmp"):
            self.kind="salu"; self.reads=set(allr(0))
        elif op.startswith("s_"):
            self.kind="salu"; self.writes=set(R(0)); self.reads=set(allr(1))
            if "saveexec" in op: self.writes.add("exec")
        else:
            raise ValueError("unknown instr: "+text)

def isvalu(i): return i.kind in ("valu","trans","permlane","readlane")

class Gen:
    def __init__(self):
        self.out=[]
        self.hist=[]
        self.vm=[]
        self.lg=[]
        self.nnop=0; self.nins=0
        self.uid=0
    def save(self): return (copy.deepcopy(self.vm), copy.deepcopy(self.lg))
    def restore(self, st):
        self.vm=copy.deepcopy(st[0]); self.lg=copy.deepcopy(st[1]); self.hist=[]
    def raw(self, text): self.out.append(text)
    def comment(self, t): self.out.append("; "+t)
    def label(self, name): self.out.append(name+":")
    def newlabel(self, p="L"):
        self.uid+=1; return f"{p}_{self.uid}"
    def _push(self, ins):
        self.out.append("  "+ins.text); self.hist.append(ins); self.nins+=1
        if len(self.hist)>24: self.hist.pop(0)
    def wait(self, vm=None, lg=None):
        p=[]
        if vm is not None:
            vm=min(vm,63)
            if vm<len(self.vm): self.vm=self.vm[len(self.vm)-vm:] if vm else []; p.append(f"vmcnt({vm})")
        if lg is not None:
            lg=min(lg,15)
            if lg<len(self.lg): self.lg=self.lg[len(self.lg)-lg:] if lg else []; p.append(f"lgkmcnt({lg})")
        if p: self._push(Ins("s_waitcnt "+" ".join(p)))
    def force_wait(self, text):
        self._push(Ins("s_waitcnt "+text))
        if "vmcnt(0)" in text: self.vm=[]
        if "lgkmcnt(0)" in text: self.lg=[]
    def wait_tag(self, tag):
        idx=[i for i,e in enumerate(self.vm) if e[1]==tag]
        if idx: self.wait(vm=len(self.vm)-1-idx[-1])
        idx=[i for i,e in enumerate(self.lg) if e[1]==tag]
        if idx:
            if any(e[2] for e in self.lg): self.wait(lg=0)
            else: self.wait(lg=len(self.lg)-1-idx[-1])
    def pending(self, tag): return any(e[1]==tag for e in self.vm)
    def _need(self, ins):
        n=0; d=0
        for p in reversed(self.hist):
            req=0
            pw=p.writes
            if p.kind=="mfma":
                full = 12 if p.passes==8 else 8
                if ins.kind=="mfma":
                    if pw & ins.srcAB: req=max(req,full)
                    if pw & ins.srcC:
                        if not (pw==ins.srcC and p.passes==ins.passes): req=max(req,full-2)
                    elif pw & ins.writes: req=max(req,full-2)
                elif isvalu(ins) or ins.kind in ("vmem","ds"):
                    if pw & (ins.reads|ins.writes): req=max(req,full)
                    if isvalu(ins) and (p.srcC & ins.writes): req=max(req, 7 if p.passes==8 else 3)
            elif isvalu(p):
                vw={r for r in pw if r[0] in "va" and r not in("vcc",)}
                sw={r for r in pw if r[0]=="s" or r=="vcc"}
                if ins.kind=="mfma" and vw & ins.reads: req=max(req,2)
                if ins.kind=="readlane" and vw & ins.reads: req=max(req,1)
                if ins.kind=="permlane" and vw & ins.reads: req=max(req,2)
                if ins.dpp and vw & ins.dppsrc: req=max(req,2)
                if p.kind=="trans" and isvalu(ins) and vw & ins.reads: req=max(req,1)
                if sw:
                    if isvalu(ins) and sw & ins.reads: req=max(req,2)
                    if ins.kind=="vmem" and sw & ins.reads: req=max(req,5)
                    if ins.kind in("salu","smem","ctl") and sw & ins.reads: req=max(req,1)
            elif p.kind=="salu":
                if "m0" in pw and "m0" in ins.reads and ins.kind in("vmem","ds"): req=max(req,1)
            elif p.kind=="vmem":
                if p.store_wide & ins.writes: req=max(req,2)
            n=max(n,req-d)
            d+=p.ws
            if d>=20: break
        return n
    def emit(self, text, tag=None):
        for line in text.split("\n"):
            line=line.strip()
            if not line: continue
            if line.startswith(";"): self.out.append(line); continue
            if line.endswith(":") or line.startswith("."): self.out.append(line); continue
            self._emit1(line, tag)
    __call__=emit
    def _emit1(self, line, tag):
        ins=Ins(line)
        touched=ins.reads|ins.writes
        vi=[i for i,e in enumerate(self.vm) if e[0]&touched]
        li=[i for i,e in enumerate(self.lg) if e[0]&touched]
        vm=lg=None
        if vi: vm=len(self.vm)-1-vi[-1]
        if li:
            lg=0 if any(e[2] for e in self.lg) else len(self.lg)-1-li[-1]
        if vm is not None or lg is not None: self.wait(vm,lg)
        n=self._need(ins)
        while n>0:
            k=min(n,16); self._push(Ins(f"s_nop {k-1}")); self.nnop+=1; n-=k
        self._push(ins)
        if ins.kind=="vmem": self.vm.append((set(ins.writes),tag))
        elif ins.kind=="ds": self.lg.append((set(ins.writes),tag,False))
        elif ins.kind=="smem": self.lg.append((set(ins.writes),tag,True))
        elif ins.op=="s_waitcnt":
            m=re.search(r"vmcnt\((\d+)\)",line)
            if m:
                k=int(m.group(1)); self.vm=self.vm[len(self.vm)-k:] if (k and k<len(self.vm)) else ([] if k==0 else self.vm)
            m=re.search(r"lgkmcnt\((\d+)\)",line)
            if m:
                k=int(m.group(1)); self.lg=self.lg[len(self.lg)-k:] if (k and k<len(self.lg)) else ([] if k==0 else self.lg)
    def text(self): return "\n".join(self.out)+"\n"

def vr(b,n=1,k="v"): return f"{k}{b}" if n==1 else f"{k}[{b}:{b+n-1}]"
def ar(b,n=1): return vr(b,n,"a")
def sr(b,n=1): return vr(b,n,"s")
```

```python
import sys, math, struct
from asmgen import *

KNAME = "parallel_sum__ssm_conv_s4__dense_activation_squared_relu__prompt_kernel"
STAMPS = "--stamps" in sys.argv
OUT = [a for a in sys.argv[1:] if not a.startswith("--")]
OUT = OUT[0] if OUT else "k.s"

def f2u(x): return struct.unpack("<I", struct.pack("<f", x))[0]

XF, W2F, YF, HF, FLG = 0x0, 0x200000, 0x400000, 0x600000, 0xE00000
F1, F2, F3, F4 = FLG+0x1000, FLG+0x11000, FLG+0x18000, FLG+0x34000
STMP = 0xF00000
WSBYTES = 0x1000000
LA = 49152
LB = 0
KSCR = 8704
UP = 4640
LU = LB
KP = 4224
LK = LB + 32256
LTAG = LB + 34816 + 64
LDS_BYTES = 163840
sW, sG, sIDX, sQ7, sR7 = 3, 4, 5, 6, 7
pU, pARE, pAIM, pBRE, pBIM, pCRE, pCIM, pLDT, pDSK, pW1, pB1, pW2, pB2, pOUT = 16,18,20,22,24,26,28,30,32,36,38,40,42,44
WS = "s[48:51]"; SX = "s[52:55]"; SW = "s[56:59]"; SO = "s[60:63]"
TAG = "s[64:65]"
sCNT = 66; sRB=67; sCB=68; sRB2=69; sD=70; sDT=71; sDSK=72
sT0,sT1,sT2,sT3 = 8,9,10,11
sC0 = 12
ST0 = 76
g = Gen()
nst = [0]
def stamp():
    if STAMPS:
        g(f"s_memrealtime s[{ST0+2*nst[0]}:{ST0+2*nst[0]+1}]")
    nst[0] += 1

def poll_issue(vdst, vaddr, soff):
    g(f"buffer_load_dwordx2 {vr(vdst,2)}, v{vaddr}, {WS}, {soff} offen sc1")
def poll_check(vdst, vaddr, soff):
    ok = g.newlabel("POK"); lp = g.newlabel("PLP")
    g(f"v_cmp_ne_u64 vcc, {TAG}, {vr(vdst,2)}")
    g(f"s_cbranch_vccz {ok}")
    g.raw(f"  s_mov_b32 s{sCNT}, 0x40000")
    g.raw(f"{lp}:")
    g.raw(f"  s_sleep 1")
    g.raw(f"  buffer_load_dwordx2 {vr(vdst,2)}, v{vaddr}, {WS}, {soff} offen sc1")
    g.raw(f"  s_waitcnt vmcnt(0)")
    g.raw(f"  v_cmp_ne_u64 vcc, {TAG}, {vr(vdst,2)}")
    g.raw(f"  s_sub_u32 s{sCNT}, s{sCNT}, 1")
    g.raw(f"  s_cbranch_scc1 {ok}")
    g.raw(f"  s_cbranch_vccnz {lp}")
    g.raw(f"{ok}:")
def set_flag(soff, vt):
    g(f"v_mov_b32 v{vt}, s64\nv_mov_b32 v{vt+1}, s65\nv_mov_b32 v{vt+2}, 0")
    g("s_mov_b64 exec, 1")
    g(f"buffer_store_dwordx2 {vr(vt,2)}, v{vt+2}, {WS}, {soff} offen sc1")
    g("s_mov_b64 exec, -1")

def rbk(d, s): return f"v_cvt_pk_bf16_f32 v{d}, 0, v{s}"

g.label("L_entry")
g("s_cmp_ge_u32 s2, 256\ns_cbranch_scc1 L_end")
stamp()
g(f"""
s_load_dwordx16 s[16:31], s[0:1], 0
s_load_dwordx16 s[32:47], s[0:1], 64
s_load_dwordx2 s[48:49], s[0:1], 128
s_getpc_b64 s[12:13]
""")
g.label("L_pc")
g(f"""
v_lshlrev_b32 v2, 7, v0
v_min_u32 v2, L_codeend-L_pc-4, v2
global_load_dword v3, v2, s[12:13]
v_and_b32 v1, 63, v0
v_lshrrev_b32 v2, 6, v0
s_and_b32 s{sG}, s2, 7
v_readfirstlane_b32 s{sW}, v2
s_lshr_b32 s{sIDX}, s2, 3
s_mul_i32 s{sQ7}, s{sIDX}, 37
s_lshr_b32 s{sQ7}, s{sQ7}, 8
s_mul_i32 s{sR7}, s{sQ7}, 7
s_sub_u32 s{sR7}, s{sIDX}, s{sR7}
s_lshr_b32 s{sT0}, s{sG}, 1
s_lshl_b32 s{sRB}, s{sT0}, 2
s_add_u32 s{sRB}, s{sRB}, s{sQ7}
s_and_b32 s{sT0}, s{sG}, 1
s_mul_i32 s{sCB}, s{sT0}, 7
s_add_u32 s{sCB}, s{sCB}, s{sR7}
s_lshl_b32 s{sRB2}, s{sG}, 2
s_add_u32 s{sRB2}, s{sRB2}, s{sQ7}
s_mul_i32 s{sD}, s{sG}, 56
s_min_u32 s{sT0}, s{sIDX}, 27
s_lshl_b32 s{sT0}, s{sT0}, 1
s_add_u32 s{sD}, s{sD}, s{sT0}
s_mov_b32 s50, {WSBYTES}
s_mov_b32 s51, 0x20000
s_mov_b32 s54, 1835008
s_mov_b32 s55, 0x20000
s_mov_b32 s58, 1605632
s_mov_b32 s59, 0x20000
s_mov_b32 s62, 1835008
s_mov_b32 s63, 0x20000
""")
g(f"""
s_lshl_b32 s{sT0}, s{sD}, 9
v_lshl_add_u32 v4, v0, 2, s{sT0}
s_lshl_b32 s{sT1}, s{sD}, 1
s_waitcnt lgkmcnt(0)
s_mov_b32 s52, s{pU}
s_mov_b32 s53, s{pU+1}
s_mov_b32 s60, s{pOUT}
s_mov_b32 s61, s{pOUT+1}
s_cmp_ge_u32 s{sIDX}, 28
s_cselect_b32 s56, s{pW2}, s{pW1}
s_cselect_b32 s57, s{pW2+1}, s{pW1+1}
""")
stamp()
PRM = 100
vX = 16
st_pre = None
g(f"s_cmp_ge_u32 s{sW}, 2\ns_cbranch_scc1 L_dma")
st0 = g.save()
def param_loads():
    for i,p in enumerate((pARE,pAIM,pBRE,pBIM,pCRE,pCIM)):
        g(f"global_load_dword v{PRM+i}, v4, s[{p}:{p+1}]")
    g(f"s_load_dword s{sDT}, s[{pLDT}:{pLDT+1}], s{sT1}\ns_load_dword s{sDSK}, s[{pDSK}:{pDSK+1}], s{sT1}")
g(f"""
s_lshl_b32 s{sT0}, s{sG}, 8
s_lshl_b32 s{sT2}, s{sIDX}, 3
s_add_u32 s{sT0}, s{sT0}, s{sT2}
s_lshl_b32 s{sT2}, s{sW}, 2
s_add_u32 s{sT0}, s{sT0}, s{sT2}
v_and_b32 v5, 3, v1
v_lshrrev_b32 v6, 2, v1
v_add_u32 v5, s{sT0}, v5
v_mul_u32_u24 v7, 896, v5
v_lshl_add_u32 v7, v6, 4, v7
v_mov_b32 v8, 0
v_mov_b32 v9, 0
s_mov_b32 s{sT3}, {FLG}
s_mov_b32 exec_hi, 0x00ffffff
""")
for j in range(4):
    g(f"buffer_load_dwordx4 {vr(vX+4*j,4)}, v7, {SX}, 0 offen offset:{224*j}")
g("s_mov_b32 exec_hi, -1")
g(f"buffer_load_dwordx2 v[10:11], v8, {WS}, s{sT3} offen sc1")
param_loads()
g(f"""
v_lshrrev_b32 v12, 5, v5
v_mul_u32_u24 v12, 28672, v12
v_and_b32 v13, 31, v5
v_lshl_add_u32 v12, v13, 4, v12
v_lshl_add_u32 v12, v6, 9, v12
s_lshl_b32 s{sT2}, s{sT0}, 5
s_add_u32 s{sT2}, s{sT2}, {F1}
s_mov_b32 s14, 0xffff0000
s_mov_b32 exec_hi, 0x00ffffff
""")
E = 32
for i in range(16):
    g(f"v_lshlrev_b32 v{E+2*i}, 16, v{vX+i}\nv_and_b32 v{E+2*i+1}, s14, v{vX+i}")
T = 64
def pk_tree(src, n, dst, fma=False):
    pass
g(f"v_pk_add_f32 v[64:65], {vr(E,2)}, {vr(E+2,2)}\nv_pk_add_f32 v[66:67], {vr(E+4,2)}, {vr(E+6,2)}")
for i in range(4,16):
    t = 64+2*(i&1)
    g(f"v_pk_add_f32 {vr(t,2)}, {vr(t,2)}, {vr(E+2*i,2)}")
g("v_pk_add_f32 v[64:65], v[64:65], v[66:67]\nv_add_f32 v8, v64, v65")
def xreduce(r, t):
    g("s_mov_b32 exec_hi, -1")
    g(f"v_add_f32_dpp v{r}, v{r}, v{r} row_ror:4 row_mask:0xf bank_mask:0xf")
    g(f"v_add_f32_dpp v{r}, v{r}, v{r} row_ror:8 row_mask:0xf bank_mask:0xf")
    g(f"v_mov_b32 v{t}, v{r}\nv_permlane16_swap_b32 v{r}, v{t}\nv_add_f32 v{r}, v{r}, v{t}")
    g(f"v_mov_b32 v{t}, v{r}\nv_permlane32_swap_b32 v{r}, v{t}\nv_add_f32 v{r}, v{r}, v{t}")
    g("s_mov_b32 exec_hi, 0x00ffffff")
xreduce(8, 14)
g(f"v_mul_f32 v68, {f2u(1/448):#x}, v8")
for i in range(16):
    t = 70+2*(i&1); acc = 64+2*(i&1)
    g(f"v_pk_add_f32 {vr(t,2)}, {vr(E+2*i,2)}, v[68:69] op_sel_hi:[1,0] neg_lo:[0,1] neg_hi:[0,1]")
    if i<2: g(f"v_pk_mul_f32 {vr(acc,2)}, {vr(t,2)}, {vr(t,2)}")
    else: g(f"v_pk_fma_f32 {vr(acc,2)}, {vr(t,2)}, {vr(t,2)}, {vr(acc,2)}")
g("v_pk_add_f32 v[64:65], v[64:65], v[66:67]\nv_add_f32 v9, v64, v65")
xreduce(9, 14)
g(rbk(68,68))
g(f"v_mul_f32 v74, {f2u(1/448):#x}, v9")
g(rbk(74,74))
g(f"v_add_f32 v74, {f2u(1e-5):#x}, v74")
g(rbk(74,74))
g("v_sqrt_f32 v74, v74")
for i in range(16):
    g(f"v_pk_add_f32 {vr(E+2*i,2)}, {vr(E+2*i,2)}, v[68:69] op_sel_hi:[1,0] neg_lo:[0,1] neg_hi:[0,1]")
    if i==0: g(rbk(74,74))
    if i==1: g("v_rcp_f32 v74, v74")
for j in range(4):
    for i in range(4*j,4*j+4):
        g(rbk(E+2*i,E+2*i)); g(rbk(E+2*i+1,E+2*i+1))
        g(f"v_pk_mul_f32 {vr(E+2*i,2)}, {vr(E+2*i,2)}, v[74:75] op_sel_hi:[1,0]")
        g(f"v_cvt_pk_bf16_f32 v{vX+i}, v{E+2*i}, v{E+2*i+1}")
    g(f"s_mov_b32 s{sT3}, {XF+7168*j}")
    g(f"buffer_store_dwordx4 {vr(vX+4*j,4)}, v12, {WS}, s{sT3} offen sc1")
g("s_mov_b32 exec_hi, -1")
g(f"""
v_readfirstlane_b32 s64, v10
v_readfirstlane_b32 s65, v11
s_add_u32 s64, s64, 0x9e3779b9
s_addc_u32 s65, s65, 0x7f4a7c15
v_mov_b32 v14, {LTAG}
""")
g.wait(vm=0)
set_flag(f"s{sT2}", 8)
g("ds_write_b64 v14, v[8:9]")
g.wait(lg=0)
g("s_branch L_join")
g.restore(st0)
g.label("L_dma")
param_loads()
g(f"""
v_and_b32 v5, 7, v1
v_lshlrev_b32 v5, 21, v5
v_mov_b32 v6, 0
buffer_load_dword v8, v5, {WS}, 0 offen
buffer_load_dword v9, v6, {SO}, 0 offen
""")
g(f"""
v_lshrrev_b32 v5, 4, v1
v_and_b32 v6, 15, v1
v_lshlrev_b32 v7, 2, v5
v_xor_b32 v6, v6, v7
v_mul_u32_u24 v5, 3584, v5
v_lshl_add_u32 v5, v6, 4, v5
s_sub_u32 s{sT0}, s{sW}, 2
s_cmp_ge_u32 s{sIDX}, 28
s_cbranch_scc1 L_dma_spare
s_mul_i32 s{sT2}, s{sT0}, {224*3584}
s_lshl_b32 s{sT3}, s{sCB}, 8
s_add_u32 s{sT2}, s{sT2}, s{sT3}
s_mul_i32 s{sT3}, s{sT0}, 57344
s_add_u32 m0, s{sT3}, {LA}
s_mov_b32 s{sT3}, {4*3584}
s_mov_b32 s{sCNT}, 14
s_branch L_dma_loop
""")
g.label("L_dma_spare")
g(f"""
v_lshlrev_b32 v5, 4, v1
s_sub_u32 s{sT2}, s{sIDX}, 28
s_lshl_b32 s{sT2}, s{sT2}, 3
s_add_u32 s{sT2}, s{sT2}, s{sG}
s_mul_i32 s{sT2}, s{sT2}, 57344
s_mul_i32 s{sT3}, s{sT0}, 28672
s_add_u32 s{sT2}, s{sT2}, s{sT3}
s_add_u32 m0, s{sT3}, {LA}
s_mov_b32 s{sT3}, 1024
s_mov_b32 s{sCNT}, 7
""")
g.label("L_dma_loop")
for i in range(4):
    g.raw(f"  buffer_load_dwordx4 v5, {SW}, s{sT2} offen lds")
    g.raw(f"  s_add_u32 m0, m0, 1024")
    g.raw(f"  s_add_u32 s{sT2}, s{sT2}, s{sT3}")
g.raw(f"  s_sub_u32 s{sCNT}, s{sCNT}, 1\n  s_cmp_lg_u32 s{sCNT}, 0\n  s_cbranch_scc1 L_dma_loop")
g.raw("  s_waitcnt vmcnt(56) lgkmcnt(0)")
g.label("L_join")
g.vm=[(set(),"w1")]; g.lg=[]; g.hist=[]
stamp()
g(f"s_cmp_ge_u32 s{sIDX}, 28\ns_cbranch_scc1 L_spare")
st_join = g.save()

KACC = 240
def cmul(d, x, y, t=None):
    t = d if t is None else t
    return [f"v_pk_mul_f32 {vr(t,2)}, {vr(x,2)}, {vr(y,2)} op_sel:[0,0] op_sel_hi:[1,0]",
            f"v_pk_fma_f32 {vr(d,2)}, {vr(x,2)}, {vr(y,2)}, {vr(t,2)} op_sel:[1,1,0] op_sel_hi:[0,1,1] neg_lo:[1,0,0]"]
vKRD = 2
vDT = 98
g(f"""
s_mul_i32 s{sT0}, s{sW}, {KSCR}
s_add_u32 s{sT0}, s{sT0}, {LB}
s_mov_b32 s73, s{sT0}
v_and_b32 v5, 31, v1
v_lshrrev_b32 v6, 5, v1
v_mul_u32_u24 v5, 272, v5
v_lshl_add_u32 v5, v6, 4, v5
v_add_u32 v{vKRD}, s{sT0}, v5
s_lshr_b32 s{sT0}, s{sW}, 1
s_cmp_eq_u32 s{sT0}, 0
s_cselect_b32 s{sT0}, 16, 0
s_lshl_b32 s{sDT}, s{sDT}, s{sT0}
s_and_b32 s{sDT}, s{sDT}, 0xffff0000
s_lshl_b32 s{sDSK}, s{sDSK}, s{sT0}
s_and_b32 s{sDSK}, s{sDSK}, 0xffff0000
v_mov_b32 v{vDT}, {f2u(math.log2(math.e)):#x}
v_mul_f32 v{vDT}, s{sDT}, v{vDT}
v_exp_f32 v{vDT}, v{vDT}
s_mov_b32 s12, {f2u(math.log2(math.e)):#x}
s_mov_b32 s13, {f2u(1/(2*math.pi)):#x}
s_mov_b32 s14, 0xffff0000
v_mov_b32 v97, 0x3f80
""")
g(rbk(vDT,vDT))
def arow(v,hh): return 8*(v>>2)+4*hh+(v&3)
def kgen_set(t):
    g.comment(f"kgen set {t}")
    g("s_mov_b32 m0, s73")
    A_,B_,C_ = 16,18,20
    for i in range(6):
        if t==0: g(f"v_lshlrev_b32 v{16+i}, 16, v{PRM+i}")
        else: g(f"v_and_b32 v{16+i}, s14, v{PRM+i}")
    Z1,Z64,W_,TT,TU = 22,24,26,28,30
    g(f"v_pk_mul_f32 {vr(A_,2)}, {vr(A_,2)}, {vr(vDT,2)} op_sel_hi:[1,0]")
    g(f"v_pk_mul_f32 {vr(B_,2)}, {vr(B_,2)}, {vr(vDT,2)} op_sel_hi:[1,0]")
    g(f"v_pk_mul_f32 {vr(A_,2)}, {vr(A_,2)}, s[12:13]")
    for l in cmul(W_, C_, B_): g(l)
    g(f"v_rndne_f32 v{TT}, v{A_+1}\nv_exp_f32 v{TU}, v{A_}\nv_sub_f32 v{A_+1}, v{A_+1}, v{TT}")
    g(f"v_cos_f32 v{Z1}, v{A_+1}\nv_sin_f32 v{Z1+1}, v{A_+1}")
    g(f"v_mul_f32 v{B_}, 0x42800000, v{A_}\nv_mul_f32 v{B_+1}, 0x42800000, v{A_+1}")
    g(f"v_pk_mul_f32 {vr(Z1,2)}, {vr(Z1,2)}, {vr(TU,2)} op_sel_hi:[1,0]")
    g(f"v_rndne_f32 v{TT}, v{B_+1}\nv_exp_f32 v{TU}, v{B_}\nv_sub_f32 v{B_+1}, v{B_+1}, v{TT}")
    g(f"v_cos_f32 v{Z64}, v{B_+1}\nv_sin_f32 v{Z64+1}, v{B_+1}")
    P = 32
    for l in cmul(P+4, Z1, Z1): g(l)
    g(f"v_pk_mul_f32 {vr(Z64,2)}, {vr(Z64,2)}, {vr(TU,2)} op_sel_hi:[1,0]")
    for l in cmul(P+6, P+4, P+4): g(l)
    for l in cmul(P+2, P+6, P+6): g(l)
    CV = 64; cvi=[0]; pend=[]
    def put(src, rows, neg=False, const=None):
        if const is None:
            c = CV+(cvi[0]%8); cvi[0]+=1
            g(f"v_cvt_pk_bf16_f32 v{c}, v{src}, {'-' if neg else ''}v{src+1}")
        else: c = const
        for r in rows: pend.append(f"ds_write_addtid_b32 v{c} offset:{r*272}")
        if len(pend)>=2:
            for l in pend: g(l)
            pend.clear()
    def flush():
        for l in pend: g(l)
        pend.clear()
    put(None,[0],const=97); put(P+2,[1])
    for k in range(2,8):
        for l in cmul(P+2*k, P+2*k-2, P+2): g(l)
        put(P+2*k,[k])
    for m in range(1,4):
        if m==1: put(Z64,[8])
        elif m==2:
            for l in cmul(P, Z64, Z64): g(l)
            put(P,[16])
        else:
            for l in cmul(P, P, Z64, TT): g(l)
            put(P,[24])
        for k in range(1,8):
            for l in cmul(P+2*k, P+2*k, Z64, TT): g(l)
            put(P+2*k,[8*m+k])
    flush()
    for s in range(8): g(f"ds_read_b128 {ar(4*s,4)}, v{vKRD} offset:{32*s}")
    for l in cmul(P, P, Z64, TT): g(l)
    Q = 48
    qreg = lambda r: W_ if r==0 else Q+2*(r-1)
    put(W_,[arow(0,0)],neg=True)
    for r in range(1,9):
        for l in cmul(qreg(r), qreg(r-1), Z1): g(l)
        if r<8: put(qreg(r),[arow(r,0)],neg=True)
    rows = {(1,0):[arow(0,1),arow(1,1)], (1,2):[arow(2,1)], (1,4):[arow(3,1),arow(4,1),arow(5,1)], (1,6):[arow(6,1)], (1,8):[arow(7,1)]}
    for hh in range(2):
        for i,r in enumerate((0,4,8)): rows[(2+hh,r)]=[arow(8+i,hh)]
        for i,r in enumerate((0,8)):
            rows[(4+hh,r)]=[arow(11+i,hh)]; rows[(6+hh,r)]=[arow(13+i,hh)]
    for m in range(1,8):
        for r in (0,2,4,6,8):
            if (m,r) in rows:
                for l in cmul(qreg(r), qreg(r), P, TT): g(l)
                put(qreg(r), rows[(m,r)], neg=True)
    flush()
    for s in range(8): g(f"ds_read_b128 {ar(32+4*s,4)}, v{vKRD} offset:{32*s}")
    for s in range(8):
        c = "0" if (t==0 and s==0) else vr(KACC,16)
        g(f"v_mfma_f32_32x32x16_bf16 {vr(KACC,16)}, {ar(32+4*s,4)}, {ar(4*s,4)}, {c}")

kgen_set(0)
stamp()
W1F = 128
g.wait_tag("w1")
g("s_barrier")
g(f"""
v_mov_b32 v14, {LTAG}
ds_read_b64 v[8:9], v14
v_lshrrev_b32 v5, 5, v1
v_bfe_u32 v6, v1, 2, 2
v_lshl_add_u32 v5, v5, 3, v6
v_lshlrev_b32 v5, 8, v5
v_xor_b32 v6, s{sW}, v6
v_lshl_add_u32 v5, v6, 6, v5
v_bfe_u32 v6, v1, 4, 1
v_lshl_add_u32 v5, v6, 5, v5
v_and_b32 v6, 3, v1
v_lshl_add_u32 v5, v6, 3, v5
v_add_u32 v5, {LA}, v5
v_add_u32 v6, 0x10000, v5
v_readfirstlane_b32 s64, v8
v_readfirstlane_b32 s65, v9
v_and_b32 v7, 31, v1
v_lshlrev_b32 v7, 7, v7
s_lshl_b32 s{sT0}, s{sRB}, 12
s_add_u32 s{sT0}, s{sT0}, {F1}
""")
poll_issue(10, 7, f"s{sT0}")
for s in range(28):
    for h in range(2):
        off = s*4096+h*1024
        g(f"ds_read_b64_tr_b16 {vr(W1F+4*s+2*h,2)}, v{5 if off<65536 else 6} offset:{off%65536}")
BIAS = 64
BRAW = 112
g(f"""
s_lshl_b32 s{sT1}, s{sCB}, 8
s_lshl_b32 s{sT2}, s{sW}, 6
s_add_u32 s{sT1}, s{sT1}, s{sT2}
v_lshrrev_b32 v8, 5, v1
v_lshl_add_u32 v8, v8, 3, s{sT1}
""")
for q in range(4): g(f"global_load_dwordx2 {vr(BRAW+2*q,2)}, v8, s[{pB1}:{pB1+1}] offset:{16*q}")
g.wait(lg=0)
g("s_barrier")
poll_check(10, 7, f"s{sT0}")
vL16 = 3
g(f"""
v_lshlrev_b32 v{vL16}, 4, v1
s_mul_i32 s{sT0}, s{sRB}, 114688
s_mul_i32 s{sT1}, s{sW}, 7168
s_add_u32 s{sT0}, s{sT0}, s{sT1}
""")
for r in range(4):
    g(f"s_add_u32 m0, s{sT1}, {LA+r*28672}")
    for i in range(7):
        if i==4:
            g(f"s_add_u32 m0, m0, 4096\ns_add_u32 s{sT0}, s{sT0}, 4096")
        g(f"buffer_load_dwordx4 v{vL16}, {WS}, s{sT0} offen offset:{(i%4)*1024} sc1 lds", tag=f"xn{r}")
    g(f"s_add_u32 s{sT0}, s{sT0}, {28672-4096}")
g(f"""
v_lshlrev_b32 v7, 7, v1
s_lshl_b32 s74, s{sW}, 14
s_add_u32 s74, s74, {F1}
s_add_u32 s75, s74, 8192
v_min_u32 v9, 27, v1
v_lshlrev_b32 v9, 7, v9
s_mul_i32 s15, s{sW}, {28*128}
s_add_u32 s15, s15, {F2}
""")
stamp()
kgen_set(1)
poll_issue(120, 7, "s74"); poll_issue(122, 7, "s75"); poll_issue(124, 9, "s15")
g(f"v_add_u32 v5, s73, v{vL16}")
g(f"s_xor_b32 s{sT0}, s{sW}, 1\ns_mul_i32 s{sT0}, s{sT0}, {KSCR}\ns_add_u32 s{sT0}, s{sT0}, {LB}\nv_add_u32 v6, s{sT0}, v{vL16}")
for q in range(4):
    g(f"v_lshlrev_b32 v{BIAS+4*q}, 16, v{BRAW+2*q}\nv_and_b32 v{BIAS+4*q+1}, s14, v{BRAW+2*q}")
    g(f"v_lshlrev_b32 v{BIAS+4*q+2}, 16, v{BRAW+2*q+1}\nv_and_b32 v{BIAS+4*q+3}, s14, v{BRAW+2*q+1}")
for q in range(4): g(f"ds_write_b128 v5, {vr(KACC+4*q,4)} offset:{1024*q}")
poll_check(120, 7, "s74"); poll_check(122, 7, "s75"); poll_check(124, 9, "s15")
g.wait(lg=0)
g.wait_tag("xn0")
g("s_barrier")
stamp()

ACC = [16, 32]; XB = 48; HOUT = 80; TMP = 88; UG = 104
fill = []
def F(text, tag=None):
    for l in text.strip().split("\n"): fill.append((l.strip(), tag))
g(f"""
v_lshrrev_b32 v10, 5, v1
v_mul_u32_u24 v10, 28672, v10
v_and_b32 v11, 31, v1
v_lshl_add_u32 v10, v11, 4, v10
s_lshr_b32 s{sT0}, s{sD}, 3
s_lshl_b32 s{sT0}, s{sT0}, 9
s_and_b32 s{sT1}, s{sD}, 7
s_lshl_b32 s{sT1}, s{sT1}, 1
s_add_u32 s{sT0}, s{sT0}, s{sT1}
s_mul_i32 s{sT1}, s{sW}, {16*28672}
s_add_u32 s{sT0}, s{sT0}, s{sT1}
""")
for i in range(8):
    g(f"buffer_load_dword v{UG+i}, v10, {WS}, s{sT0} offen sc1")
    if i<7: g(f"s_add_u32 s{sT0}, s{sT0}, {2*28672}")
KR = 112
for q in range(4): F(f"ds_read_b128 {vr(KR+4*q,4)}, v6 offset:{1024*q}")
F(f"""s_mul_i32 s{sT0}, s{sW}, {KP}
s_and_b32 s{sT1}, s{sW}, 1
s_lshl_b32 s{sT1}, s{sT1}, 2
s_add_u32 s{sT0}, s{sT0}, s{sT1}
s_add_u32 s{sT0}, s{sT0}, {LK+4080}
v_sub_u32 v5, s{sT0}, v{vL16}
v_and_b32 v11, 1, v1
v_cmp_eq_u32 vcc, 1, v11""")
for i in range(15): F(f"v_add_f32 v{KACC+i}, v{KACC+i}, v{KR+i}")
k_ = lambda i: KACC+i
def kchunk(pairs):
    for j,(lo,hi) in enumerate(pairs): F(f"v_cvt_pk_bf16_f32 v{TMP+j}, v{lo}, v{hi}")
    F(f"ds_write2_b32 v5, v{TMP}, v{TMP+1} offset0:0 offset1:1")
    F(f"ds_write2_b32 v5, v{TMP+2}, v{TMP+3} offset0:2 offset1:3")
kchunk([(k_(7),k_(6)),(k_(5),k_(4)),(k_(3),k_(2)),(k_(1),k_(0))])
F("v_subrev_u32 v5, 1024, v5")
kchunk([(k_(10),k_(10)),(k_(9),k_(9)),(k_(9),k_(8)),(k_(8),k_(8))])
for a,c in ((11,12),(13,14)):
    F("v_subrev_u32 v5, 1024, v5")
    F(f"v_cndmask_b32 v{TMP+4}, v{k_(a)}, v{k_(c)}, vcc")
    kchunk([(k_(c),k_(c)),(k_(c),TMP+4),(k_(a),k_(a)),(k_(a),k_(a))])
F(f"""v_and_b32 v11, 15, v1
v_lshl_add_u32 v11, v11, 2, s{sT0}
v_mov_b32 v12, 0
v_mov_b32 v13, 0
ds_write_b32 v11, v12 offset:16""")
fill_pass0 = fill; fill = []
F(f"""s_mul_i32 s{sT0}, s{sW}, {UP}
s_add_u32 s{sT0}, s{sT0}, {LU}
v_min_u32 v11, 55, v1
v_lshl_add_u32 v11, v11, 3, s{sT0}
ds_write_b64 v11, v[12:13]
s_lshl_b32 s{sT0}, s{sW}, 10
s_add_u32 s{sT0}, s{sT0}, {LU+448}
v_lshl_add_u32 v11, v1, 1, s{sT0}""")
for i in range(8):
    F(f"ds_write_b16 v11, v{UG+i} offset:{128*i+2}")
    F(f"ds_write_b16 v11, v{UG+i} offset:{128*i+UP}")
    F(f"ds_write_b16_d16_hi v11, v{UG+i} offset:{128*i+2*UP+2}")
    F(f"ds_write_b16_d16_hi v11, v{UG+i} offset:{128*i+3*UP}")
F(f"v_mov_b32 v11, {LU+448}\nds_write_b16 v11, v12\nds_write_b16 v11, v12 offset:{2*UP}")
fill_u = fill; fill = []
sW2 = [74, 75]
g(f"""
s_and_b32 s{sT0}, s{sW}, 1
s_lshl_b32 s{sT1}, s{sR7}, 1
s_add_u32 s{sT1}, s{sT1}, s{sT0}
s_mul_i32 s75, s{sT1}, {112*1024}
s_xor_b32 s{sT1}, s{sT1}, 1
s_mul_i32 s74, s{sT1}, {112*1024}
s_mul_i32 s{sT0}, s{sW}, {28*1024}
s_add_u32 s{sT0}, s{sT0}, {W2F}
s_add_u32 s74, s74, s{sT0}
s_add_u32 s75, s75, s{sT0}
""")
w2l = []
for i in range(28):
    for j in range(2):
        t = f"buffer_load_dwordx4 {ar((j*28+i)*4,4)}, v{vL16}, {WS}, s{sW2[j]} offen offset:{(i%4)*1024} sc1"
        if i%4==3: t += f"\ns_add_u32 s{sW2[j]}, s{sW2[j]}, 4096"
        w2l.append(t)
g(f"""
s_mul_i32 s15, s{sRB}, {4*112*1024}
s_lshl_b32 s{sT0}, s{sCB}, 13
s_add_u32 s15, s15, s{sT0}
s_lshl_b32 s{sT0}, s{sW}, 11
s_add_u32 s15, s15, s{sT0}
s_add_u32 s15, s15, {HF}
v_add_u32 v4, 0x10000, v{vL16}
v_add_u32 v15, 0x20000, v{vL16}
""")
def g1_epilogue(r):
    a = ACC[r&1]; L=[]
    for h in range(2):
        for p in range(4):
            i = 8*h+2*p
            for e in (i,i+1):
                t = TMP+8+(e&1)
                L.append(rbk(t, a+e)); L.append(f"v_add_f32 v{t}, v{t}, v{BIAS+e}"); L.append(rbk(t,t)); L.append(f"v_mul_f32 v{t}, v{t}, |v{t}|")
            L.append(f"v_cvt_pk_bf16_f32 v{HOUT+4*h+p}, v{TMP+8}, v{TMP+9}")
            L.append(f"v_pk_max_i16 v{HOUT+4*h+p}, v{HOUT+4*h+p}, 0")
        L.append(f"buffer_store_dwordx4 {vr(HOUT+4*h,4)}, v{vL16}, {WS}, s15 offen offset:{1024*h} sc1")
    L.append(f"s_add_u32 s15, s15, {112*1024}")
    return [(l,"hst" if "store" in l else None) for l in L]
def xread(n):
    off = LA+n*1024
    g(f"ds_read_b128 {vr(XB+4*(n%4),4)}, v{[vL16,4,15][off>>16]} offset:{off%65536}")
AHEAD = 3
for n in range(AHEAD): xread(n)
queue = list(fill_pass0)
w2i = 0
for n in range(112):
    r, s = divmod(n, 28)
    if s==0 and r>0:
        assert not queue, (r, len(queue))
        queue += g1_epilogue(r-1)
        if r==1: queue += fill_u
    c = "0" if s==0 else vr(ACC[r&1],16)
    g(f"v_mfma_f32_32x32x16_bf16 {vr(ACC[r&1],16)}, {vr(W1F+4*s,4)}, {vr(XB+4*(n%4),4)}, {c}")
    nn = n+AHEAD
    if nn<112:
        if nn%28==0:
            if nn==28:
                assert True
            g.wait_tag(f"xn{nn//28}")
            g.wait(lg=0) if nn==28 else None
            g("s_barrier")
        xread(nn)
    left = 28-s
    k = 0 if (s<2 and r>0) else -(-len(queue)//max(left-1,1))
    k = min(k, 5)
    for _ in range(k):
        if queue:
            l,tg = queue.pop(0); g(l, tag=tg)
    if n>=28 and n%2==0 and w2i<len(w2l):
        g(w2l[w2i]); w2i+=1
while queue:
    l,tg = queue.pop(0); g(l, tag=tg)
for l,tg in g1_epilogue(3): g(l, tag=tg)
stamp()
g.wait(lg=0)
g("s_barrier")

CA = 16; CF = 48; CG = 80
vGA, vFA = 5, 6
g(f"""
v_and_b32 v7, 15, v1
v_lshrrev_b32 v8, 4, v1
v_lshlrev_b32 v9, 4, v8
v_lshlrev_b32 v10, 2, v7
v_sub_u32 v9, v9, v10
v_and_b32 v10, 1, v1
v_xor_b32 v11, 1, v10
v_mul_u32_u24 v11, {KP+4}, v11
v_add_u32 v9, v9, v11
s_lshr_b32 s{sT0}, s{sW}, 1
s_and_b32 s{sT1}, s{sW}, 1
s_mul_i32 s{sT2}, s{sT0}, {2*KP}
s_lshl_b32 s{sT3}, s{sT1}, 8
s_sub_u32 s{sT2}, s{sT2}, s{sT3}
s_add_u32 s{sT2}, s{sT2}, {LK+4092-64*3-512*7}
v_add_u32 v{vGA}, s{sT2}, v9
v_lshrrev_b32 v9, 1, v7
v_lshlrev_b32 v9, 6, v9
v_lshl_add_u32 v9, v8, 4, v9
v_mul_u32_u24 v10, {UP}, v10
v_add_u32 v9, v9, v10
s_mul_i32 s{sT2}, s{sT0}, {2*UP}
s_add_u32 s{sT2}, s{sT2}, {LU+448}
v_add_u32 v12, s{sT2}, v9
s_sub_u32 s{sT2}, s{sT2}, s{sT3}
s_sub_u32 s{sT2}, s{sT2}, {64*3}
v_add_u32 v{vFA}, s{sT2}, v9
""")
def gread(j,m):
    off = 64*(3-j)+512*(7-m)
    return [f"ds_read_b64 {vr(CG+4*m,2)}, v{vGA} offset:{off}", f"ds_read_b64 {vr(CG+4*m+2,2)}, v{vGA} offset:{off+8}"]
def fread(j,dl):
    return [f"ds_read_b128 {vr(CF+4*dl,4)}, v{vFA} offset:{64*(3-j)+512*dl}"]
for l in gread(0,0): g(l)
for dl in range(7,-1,-1):
    for l in fread(0,dl): g(l)
for m in range(1,8):
    for l in gread(0,m): g(l)
g(f"""
s_mul_i32 s{sT2}, s{sRB}, 56
s_lshl_b32 s{sT3}, s{sCB}, 2
s_add_u32 s{sT2}, s{sT2}, s{sT3}
s_add_u32 s{sT2}, s{sT2}, s{sW}
s_lshl_b32 s{sT2}, s{sT2}, 7
s_add_u32 s{sT2}, s{sT2}, {F3}
""")
g(f"""
v_min_u32 v13, 13, v1
v_lshlrev_b32 v13, 7, v13
s_lshr_b32 s{sT3}, s{sRB2}, 1
s_mul_i32 s{sT3}, s{sT3}, 56
s_mul_i32 s15, s{sW}, 14
s_add_u32 s{sT3}, s{sT3}, s15
s_lshl_b32 s{sT3}, s{sT3}, 7
s_add_u32 s{sT3}, s{sT3}, {F3}
""")
sH = [12, 13]
g(f"""
s_lshl_b32 s15, s{sRB2}, 1
s_add_u32 s15, s15, s{sT0}
s_mul_i32 s13, s15, {112*1024}
s_xor_b32 s15, s15, 1
s_mul_i32 s12, s15, {112*1024}
s_mul_i32 s15, s{sW}, {28*1024}
s_add_u32 s15, s15, {HF}
s_add_u32 s12, s12, s15
s_add_u32 s13, s13, s15
""")
def hload(j,i):
    t = f"buffer_load_dwordx4 {vr(W1F+4*i,4)}, v{vL16}, {WS}, s{sH[j]} offen offset:{(i%4)*1024} sc1"
    if i%4==3: t += f"\ns_add_u32 s{sH[j]}, s{sH[j]}, 4096"
    return t
first = [True]*8
cn = 0; hi_ = 0
FLAG_AT, POLLI_AT, POLLC_AT = 24, 64, 84
for j in range(4):
    for m in range(8):
        dls = list(range(7-m,-1,-1))
        for dl in dls:
            tau = m+dl
            c = "0" if first[tau] else vr(CA+4*tau,4); first[tau]=False
            g(f"v_mfma_f32_16x16x32_bf16 {vr(CA+4*tau,4)}, {vr(CG+4*m,4)}, {vr(CF+4*dl,4)}, {c}")
            if j<3 and dl==7-m:
                for l in fread(j+1,dl): g(l)
            if j<3 and dl==0:
                for l in gread(j+1,m): g(l)
            cn += 1
            if cn%3==0 and w2i<len(w2l) and cn>FLAG_AT-1000:
                g(w2l[w2i]); w2i+=1
            if cn==FLAG_AT:
                g.wait_tag("hst"); set_flag(f"s{sT2}", 112)
            if cn==POLLI_AT: poll_issue(116, 13, f"s{sT3}")
            if cn==POLLC_AT: poll_check(116, 13, f"s{sT3}")
            if cn>POLLC_AT and cn%2==0 and hi_<28:
                g(hload(0,hi_)); hi_+=1
assert w2i==len(w2l)
while hi_<28: g(hload(0,hi_)); hi_+=1
stamp()
g(f"""
s_lshl_b32 s{sT2}, s{sW}, 12
s_add_u32 s{sT2}, s{sT2}, {LA}
v_add_u32 v7, s{sT2}, v{vL16}
s_xor_b32 s{sT2}, s{sT2}, 4096
v_add_u32 v8, s{sT2}, v{vL16}
s_lshl_b32 s{sT2}, s{sT1}, 11
v_add_u32 v12, s{sT2}, v12
""")
for t in range(4): g(f"ds_read_b128 {vr(CF+4*t,4)}, v12 offset:{512*t}")
g(f"s_cmp_eq_u32 s{sT1}, 0\ns_cbranch_scc1 L_cv0")
sv = g.save(); hist = list(g.hist)
for t in range(4): g(f"ds_write_b128 v7, {vr(CA+4*t,4)} offset:{1024*t}")
for i in range(16): g(f"v_mov_b32 v{CA+i}, v{CA+16+i}")
g("s_branch L_cv1")
g.restore(sv); g.hist = hist
g.label("L_cv0")
for t in range(4): g(f"ds_write_b128 v7, {vr(CA+16+4*t,4)} offset:{1024*t}")
g.label("L_cv1")
g.hist=[]
for i in range(16):
    g(f"v_and_b32 v{CF+i}, s14, v{CF+i}\nv_mul_f32 v{CF+i}, s{sDSK}, v{CF+i}"); g(rbk(CF+i,CF+i))
g.wait(lg=0)
g("s_barrier")
for t in range(4): g(f"ds_read_b128 {vr(CG+4*t,4)}, v8 offset:{1024*t}")
g(f"""
v_bfe_u32 v7, v1, 4, 1
v_bfe_u32 v9, v1, 2, 2
v_lshl_add_u32 v7, v7, 2, v9
v_mul_u32_u24 v7, {448*128}, v7
v_lshrrev_b32 v9, 5, v1
v_lshl_add_u32 v7, v9, 6, v7
v_and_b32 v9, 3, v1
v_lshl_add_u32 v7, v9, 4, v7
s_add_u32 s{sT2}, s{sD}, s{sT0}
s_lshl_b32 s15, s{sT2}, 7
s_mul_i32 s{sT3}, s{sT1}, {16*448*128}
s_add_u32 s15, s15, s{sT3}
s_add_u32 s15, s15, {YF}
s_mul_i32 s{sT3}, s{sT1}, 448
s_add_u32 s{sT2}, s{sT2}, s{sT3}
s_lshl_b32 s{sT2}, s{sT2}, 7
s_add_u32 s{sT2}, s{sT2}, {F4}
""")
YO = 112
for p in range(2):
    for i in range(8*p, 8*p+8):
        g(f"v_add_f32 v{CA+i}, v{CA+i}, v{CG+i}"); g(rbk(CA+i,CA+i)); g(f"v_add_f32 v{CA+i}, v{CA+i}, v{CF+i}")
    for i in range(4): g(f"v_cvt_pk_bf16_f32 v{YO+4*p+i}, v{CA+8*p+2*i}, v{CA+8*p+2*i+1}")
    g(f"v_permlane16_swap_b32 v{YO+4*p}, v{YO+4*p+2}\nv_permlane16_swap_b32 v{YO+4*p+1}, v{YO+4*p+3}")
    g(f"buffer_store_dwordx4 {vr(YO+4*p,4)}, v7, {WS}, s15 offen sc1", tag="yst")
    if p==0: g(f"s_add_u32 s15, s15, {8*448*128}")
stamp()

GA = 16
TQ = 80
EF = 96
YFR = 104
XR = 120
B2R = 240; B2 = 240
g(f"""
s_lshl_b32 s74, s{sRB2}, 1
s_add_u32 s74, s74, s{sT0}
s_mul_i32 s74, s74, {32*896}
s_lshl_b32 s75, s{sR7}, 1
s_add_u32 s75, s75, s{sT1}
s_lshl_b32 s73, s75, 6
s_add_u32 s74, s74, s73
v_and_b32 v8, 31, v1
v_lshrrev_b32 v9, 5, v1
v_mul_u32_u24 v10, 896, v8
v_lshl_add_u32 v11, v9, 3, v10
v_lshl_add_u32 v10, v9, 4, v10
v_lshl_add_u32 v12, v9, 3, s73
""")
for q in range(4): g(f"buffer_load_dwordx2 {vr(XR+2*q,2)}, v11, {SX}, s74 offen offset:{16*q}")
for q in range(4): g(f"global_load_dwordx2 {vr(112+2*q,2)}, v12, s[{pB2}:{pB2+1}] offset:{16*q}")
fill = []
F(f"v_sub_u32 v13, v8, v9\nv_mov_b32 v14, 0x3f80\nv_mov_b32 v15, 0x3f800000")
for k in range(2):
    for p in range(4):
        F(f"v_cmp_eq_u32 vcc, {16*k+4*p}, v13\nv_cndmask_b32 v{EF+4*k+p}, 0, v14, vcc")
        F(f"v_cmp_eq_u32 vcc, {16*k+4*p+2}, v13\nv_cndmask_b32 v{EF+4*k+p}, v{EF+4*k+p}, v15, vcc")
F(f"""s_lshr_b32 s{sT3}, s{sRB2}, 4
s_mul_i32 s{sT3}, s{sT3}, 448
s_lshl_b32 s75, s75, 5
s_add_u32 s{sT3}, s{sT3}, s75
s_lshl_b32 s{sT3}, s{sT3}, 7
s_add_u32 s{sT3}, s{sT3}, {F4}
v_lshlrev_b32 v13, 7, v8
v_lshl_add_u32 v14, v9, 4, v13
s_mul_i32 s73, s{sRB2}, 448
s_add_u32 s73, s73, s75
s_lshl_b32 s73, s73, 7
s_lshl_b32 s75, s{sT0}, 5
s_add_u32 s73, s73, s75
s_add_u32 s73, s73, {YF}""")
for j in range(3):
    F(f"s_xor_b32 s75, s{sW}, {j^3}\ns_mul_i32 s75, s75, {3*4096}\ns_add_u32 s75, s75, {LA+16384+j*4096}\nv_add_u32 v{5+j}, s75, v{vL16}")
F(f"s_mul_i32 s75, s{sW}, {3*4096}\ns_add_u32 s75, s75, {LA+16384}\nv_add_u32 v12, s75, v{vL16}")
queue = fill
YPI, YPC = 70, 90
yflag_done = False
n = 0
for rt in range(2):
    for i in range(28):
        for ct in range(2):
            j = 2*rt+ct
            c = "0" if i==0 else vr(GA+16*j,16)
            g(f"v_mfma_f32_32x32x16_bf16 {vr(GA+16*j,16)}, {ar((ct*28+i)*4,4)}, {vr(W1F+4*i,4)}, {c}")
            n += 1
            for _ in range(3):
                if queue:
                    l,tg = queue.pop(0); g(l, tag=tg)
            if not yflag_done and (not g.pending("yst") or n==30):
                g.wait_tag("yst"); set_flag(f"s{sT2}", 104); yflag_done=True
            if n==40:
                for q in range(8):
                    queue.append((f"v_lshlrev_b32 v{B2+2*q}, 16, v{112+q}",None)); queue.append((f"v_and_b32 v{B2+2*q+1}, s14, v{112+q}",None))
            if n==60:
                for jj in range(2):
                    for q in range(4): queue.append((f"ds_write_b128 v{5+jj}, {vr(GA+16*jj+4*q,4)} offset:{1024*q}",None)); queue.append(("s_nop 0",None)); queue.append(("s_nop 0",None))
            if n==YPI: poll_issue(116, 13, f"s{sT3}")
            if n==YPC:
                poll_check(116, 13, f"s{sT3}")
                for k in range(2): g(f"buffer_load_dwordx4 {vr(YFR+4*k,4)}, v14, {WS}, s73 offen offset:{64*k} sc1")
        if rt==0: g(hload(1,i))
assert not queue
g(f"v_mfma_f32_32x32x16_bf16 {vr(TQ,16)}, {vr(YFR,4)}, {vr(EF,4)}, 0")
g(f"v_mfma_f32_32x32x16_bf16 {vr(TQ,16)}, {vr(YFR+4,4)}, {vr(EF+4,4)}, {vr(TQ,16)}")
for q in range(4): g(f"ds_write_b128 v7, {vr(GA+32+4*q,4)} offset:{1024*q}")
stamp()
g.wait(lg=0)
g("s_barrier")
for j in range(3):
    for q in range(4): g(f"ds_read_b128 {vr(GA+16*j+4*q,4)}, v12 offset:{4096*j+1024*q}")
for q in range(8):
    g(f"v_lshlrev_b32 v104, 16, v{XR+q}\nv_and_b32 v105, s14, v{XR+q}")
    g(f"v_pk_add_f32 {vr(TQ+2*q,2)}, {vr(TQ+2*q,2)}, v[104:105]")
    g(rbk(TQ+2*q,TQ+2*q)); g(rbk(TQ+2*q+1,TQ+2*q+1))
O = GA+48
for j in range(3):
    for q in range(8): g(f"v_pk_add_f32 {vr(O+2*q,2)}, {vr(O+2*q,2)}, {vr(GA+16*j+2*q,2)}")
for h in range(2):
    for q in range(4*h,4*h+4):
        g(rbk(O+2*q,O+2*q)); g(rbk(O+2*q+1,O+2*q+1))
        g(f"v_pk_add_f32 {vr(O+2*q,2)}, {vr(O+2*q,2)}, {vr(B2+2*q,2)}")
        g(rbk(O+2*q,O+2*q)); g(rbk(O+2*q+1,O+2*q+1))
        g(f"v_pk_add_f32 {vr(O+2*q,2)}, {vr(O+2*q,2)}, {vr(TQ+2*q,2)}")
        g(f"v_cvt_pk_bf16_f32 v{112+q}, v{O+2*q}, v{O+2*q+1}")
    g(f"v_permlane32_swap_b32 v{112+4*h}, v{112+4*h+2}\nv_permlane32_swap_b32 v{112+4*h+1}, v{112+4*h+3}")
    g(f"buffer_store_dwordx4 {vr(112+4*h,4)}, v10, {SO}, s74 offen offset:{32*h}")
g(f"s_or_b32 s{sT0}, s2, s{sW}\ns_cmp_lg_u32 s{sT0}, 0\ns_cbranch_scc1 L_fin")
g(f"s_mov_b32 s{sT2}, {FLG}")
set_flag(f"s{sT2}", 8)
g("s_branch L_fin")

g.restore(st_join)
g.label("L_spare")
g(f"""
s_sub_u32 s{sT0}, s{sIDX}, 28
s_lshl_b32 s{sT0}, s{sT0}, 3
s_add_u32 s{sT0}, s{sT0}, s{sG}
""")
g.wait_tag("w1")
g(f"s_barrier\ns_cmp_ge_u32 s{sT0}, 28\ns_cbranch_scc1 L_fin")
g(f"""
v_mov_b32 v14, {LTAG}
ds_read_b64 v[8:9], v14
v_lshrrev_b32 v5, 5, v1
v_bfe_u32 v6, v1, 2, 2
v_lshl_add_u32 v5, v5, 2, v6
v_mul_u32_u24 v5, 896, v5
v_bfe_u32 v6, v1, 4, 1
v_lshl_add_u32 v5, v6, 5, v5
v_and_b32 v6, 3, v1
v_lshl_add_u32 v5, v6, 3, v5
s_mul_i32 s{sT1}, s{sW}, {16*896}
s_add_u32 s{sT1}, s{sT1}, {LA}
v_add_u32 v5, s{sT1}, v5
v_lshlrev_b32 v3, 4, v1
s_lshl_b32 s{sT0}, s{sT0}, 2
s_add_u32 s{sT0}, s{sT0}, s{sW}
s_lshl_b32 s{sT1}, s{sT0}, 10
s_add_u32 s{sT1}, s{sT1}, {W2F}
s_lshl_b32 s{sT2}, s{sT0}, 7
s_add_u32 s{sT2}, s{sT2}, {F2}
v_readfirstlane_b32 s64, v8
v_readfirstlane_b32 s65, v9
""")
for ct in range(14):
    g(f"ds_read_b64_tr_b16 {vr(16+4*ct,2)}, v5 offset:{64*ct}")
    g(f"ds_read_b64_tr_b16 {vr(18+4*ct,2)}, v5 offset:{64*ct+8*896}")
for ct in range(14):
    g(f"buffer_store_dwordx4 {vr(16+4*ct,4)}, v3, {WS}, s{sT1} offen sc1")
    g(f"s_add_u32 s{sT1}, s{sT1}, {112*1024}")
g.wait(vm=0)
set_flag(f"s{sT2}", 8)
g.label("L_fin")
g.hist=[]
if STAMPS:
    stamp()
    g.force_wait("vmcnt(0) lgkmcnt(0)")
    g(f"s_memrealtime s[{ST0+2*nst[0]}:{ST0+2*nst[0]+1}]"); nst[0]+=1
    g.force_wait("lgkmcnt(0)")
    g(f"s_lshl_b32 s{sT0}, s2, 2\ns_add_u32 s{sT0}, s{sT0}, s{sW}\ns_lshl_b32 s{sT0}, s{sT0}, 6\ns_add_u32 s{sT0}, s{sT0}, {STMP}\nv_mov_b32 v2, 0\ns_mov_b64 exec, 1")
    for i in range(nst[0]):
        g(f"v_mov_b32 v3, s{ST0+2*i}\nbuffer_store_dword v3, v2, {WS}, s{sT0} offen offset:{4*i}")
g.label("L_end")
g.raw("  s_endpgm")
g.label("L_codeend")

hdr = open("parallel_sum__ssm_conv_s4__dense_activation_squared_relu__prompt.s.ref").read().split("; Override launch")[0]
txt = hdr + f"""; @launch grid=(256,1,1) block=(256,1,1) lds={LDS_BYTES}
.amdgcn_target "amdgcn-amd-amdhsa--gfx950"
.text
.globl {KNAME}
.p2align 8
.type {KNAME},@function
{KNAME}:
""" + g.text() + f""".section .rodata,"a"
.p2align 6
.amdhsa_kernel {KNAME}
  .amdhsa_next_free_vgpr 512
  .amdhsa_next_free_sgpr 102
  .amdhsa_accum_offset 256
  .amdhsa_group_segment_fixed_size 0
  .amdhsa_kernarg_size 136
  .amdhsa_user_sgpr_count 2
  .amdhsa_user_sgpr_kernarg_segment_ptr 1
  .amdhsa_system_sgpr_workgroup_id_x 1
.end_amdhsa_kernel
"""
open(OUT,"w").write(txt)
print("instructions:", g.nins, "nops:", g.nnop, "stamps:", nst[0], file=sys.stderr)
```
